```python
import torch

def _softmax(x, axis=-1):
    return torch.softmax(x, dim=axis)

def _gelu(x):
    return torch.nn.functional.gelu(x, approximate='tanh')

def _silu(x):
    return torch.nn.functional.silu(x)

def _sigmoid(x):
    return torch.sigmoid(x)

def _layernorm(x, axis=-1, eps=1e-05):
    m = x.mean(dim=axis, keepdim=True)
    v = x.var(dim=axis, keepdim=True, unbiased=False)
    return (x - m) / torch.sqrt(v + eps)

def _scatter_add(tgt, idx, src, axis=0):
    return tgt.clone().index_add_(axis, idx, src)

def _segment_sum(src, seg, n):
    out = torch.zeros((n,) + src.shape[1:], dtype=src.dtype)
    return out.index_add_(0, seg, src)

def _pad(x, pw):
    flat = tuple((v for pair in reversed(pw) for v in pair))
    return torch.nn.functional.pad(x, flat)
kernel_name = 'adaLN_cond__gqa_block_cached__swiglu_ffn__decode'

def setup_inputs():

    _w = lambda a: (lambda t: t.to(torch.bfloat16) if t.is_floating_point() else t)(torch.as_tensor(a))

    def _A_setup():
        B, Sq, D = (1, 1, 512)
        Hq, Hkv, Sk, Dh = (32, 8, 65536, 128)
        assert Hq % Hkv == 0, (Hq, Hkv)
        return {'x': _w((lambda *s: torch.randn(*s, dtype=torch.bfloat16) * 0.05)(B, Sq, D)), 'k_cache': _w((lambda *s: torch.randn(*s, dtype=torch.bfloat16) * 3.2)(B, Hkv, Sk, Dh)), 'v_cache': _w((lambda *s: torch.randn(*s, dtype=torch.bfloat16) * 0.4)(B, Hkv, Sk, Dh)), 'wq': _w((lambda *s: torch.randn(*s, dtype=torch.bfloat16) * 3.2)(D, Hq * Dh) * D ** (-0.5)), 'wo': _w((lambda *s: torch.randn(*s, dtype=torch.bfloat16) * 0.4)(Hq * Dh, D) * (Hq * Dh) ** (-0.5))}
    _A_in = _A_setup()

    def _B_setup():
        B, S, D, F = (1, 1, 512, 1792)
        return {'x': _w((lambda *s: torch.randn(*s, dtype=torch.bfloat16) * 0.05)(B, S, D)), 'w_gate': _w((lambda *s: torch.randn(*s, dtype=torch.bfloat16) * 0.05)(D, F)), 'w_up': _w((lambda *s: torch.randn(*s, dtype=torch.bfloat16) * 0.05)(D, F)), 'w_down': _w((lambda *s: torch.randn(*s, dtype=torch.bfloat16) * 0.05)(F, D))}
    _B_in = _B_setup()
    return {'A_x': _A_in['x'], 'A_k_cache': _A_in['k_cache'], 'A_v_cache': _A_in['v_cache'], 'A_wq': _A_in['wq'], 'A_wo': _A_in['wo'], 'B_x': _B_in['x'], 'B_w_gate': _B_in['w_gate'], 'B_w_up': _B_in['w_up'], 'B_w_down': _B_in['w_down'], 'c': _w((lambda *s: torch.randn(*s, dtype=torch.bfloat16) * 0.2)(1, 512) * 8.0), 'w_mod': _w((lambda *s: torch.randn(*s, dtype=torch.bfloat16) * 0.2)(512, 6 * 512) * 512 ** (-0.5) * 8.0)}

def reference(A_x, A_k_cache, A_v_cache, A_wq, A_wo, B_x, B_w_gate, B_w_up, B_w_down, c, w_mod):

    def _A_ref(x, k_cache, v_cache, wq, wo):
        B, Sq, D = x.shape
        Hq, Dh = (32, 128)
        Hkv = k_cache.shape[1]
        rep = Hq // Hkv
        q = (lambda x, *d: x.permute(*d))((x @ wq).reshape(B, Sq, Hq, Dh), 0, 2, 1, 3)
        k = (lambda x, n, axis: torch.repeat_interleave(x, n, dim=axis))(k_cache, rep, axis=1)
        v = (lambda x, n, axis: torch.repeat_interleave(x, n, dim=axis))(v_cache, rep, axis=1)
        scores = torch.einsum('bhqd,bhkd->bhqk', q, k) * Dh ** (-0.5)
        p = _softmax(scores, axis=-1)
        o = torch.einsum('bhqk,bhkd->bhqd', p, v)
        return (lambda x, *d: x.permute(*d))(o, 0, 2, 1, 3).reshape(B, Sq, Hq * Dh) @ wo

    def _B_ref(x, w_gate, w_up, w_down):
        g = _silu(x @ w_gate)
        u = x @ w_up
        return g * u @ w_down
    x = A_x
    mod = (_silu(c) @ w_mod).reshape(c.shape[0], 6, 1, -1)
    sa, ca, ga, sb, cb, gb = (mod[:, 0].clone(), mod[:, 1].clone(), mod[:, 2].clone(), mod[:, 3].clone(), mod[:, 4].clone(), mod[:, 5].clone())
    h = _layernorm(x, axis=-1) * (1 + ca) + sa
    x = x + ga * _A_ref(h, A_k_cache, A_v_cache, A_wq, A_wo)
    h = _layernorm(x, axis=-1) * (1 + cb) + sb
    x = x + gb * _B_ref(h, B_w_gate, B_w_up, B_w_down)
    return x
```

```python
import re
TRANS = ("v_exp_f32", "v_log_f32", "v_rcp_f32", "v_rsq_f32", "v_sqrt_f32", "v_sin_f32", "v_cos_f32", "v_rcp_iflag_f32")
def regs_of(op):
    op = op.strip()
    op = op.lstrip("-")
    if op.startswith("abs("): op = op[4:-1]
    if op.startswith("|"): op = op.strip("|")
    m = re.fullmatch(r"([vsa])(\d+)", op)
    if m: return {(m.group(1), int(m.group(2)))}
    m = re.fullmatch(r"([vsa])\[(\d+):(\d+)\]", op)
    if m: return {(m.group(1), i) for i in range(int(m.group(2)), int(m.group(3)) + 1)}
    if op == "vcc": return {("s", "vcc_lo"), ("s", "vcc_hi")}
    if op in ("vcc_lo", "vcc_hi"): return {("s", op)}
    if op == "exec": return {("s", "exec")}
    if op == "m0": return {("s", "m0")}
    return set()
class Ins:
    def __init__(self, text):
        self.text = text
        t = text.split(";")[0].strip()
        parts = t.split(None, 1)
        self.mn = parts[0]
        rest = parts[1] if len(parts) > 1 else ""
        ops = []; depth = 0; cur = ""
        for ch in rest:
            if ch in "[(": depth += 1
            if ch in "])": depth -= 1
            if ch == "," and depth == 0: ops.append(cur.strip()); cur = ""
            else: cur += ch
        if cur.strip(): ops.append(cur.strip())
        if ops:
            last = ops[-1].split()
            ops[-1] = last[0]; self.mods = " ".join(last[1:])
        else: self.mods = ""
        self.ops = ops
        mn = self.mn
        self.valu = mn.startswith("v_") and not mn.startswith("v_mfma")
        self.mfma = mn.startswith("v_mfma")
        self.dpp = "_dpp" in mn
        self.trans = any(mn.startswith(x) for x in TRANS)
        self.vmem = mn.startswith(("buffer_", "global_", "flat_"))
        self.ds = mn.startswith("ds_")
        self.salu = mn.startswith("s_")
        self.perml = mn.startswith("v_permlane")
        self.rdlane = mn.startswith(("v_readlane", "v_readfirstlane"))
        R = [regs_of(o) for o in ops]
        self.wr = set(); self.rd = set(); self.srcC = set(); self.srcAB = set(); self.stdata = set()
        if self.mfma:
            self.wr = R[0]; self.srcAB = R[1] | R[2]; self.srcC = R[3]; self.rd = self.srcAB | self.srcC
            self.passes = 8 if "32x32" in mn else 4
        elif self.valu:
            if self.perml: self.wr = R[0] | R[1]; self.rd = R[0] | R[1]
            elif mn.startswith(("v_add_co", "v_sub_co", "v_addc_co", "v_subb_co")):
                self.wr = R[0] | R[1]; self.rd = set().union(*R[2:])
            else:
                self.wr = R[0]; self.rd = set().union(*R[1:]) if len(R) > 1 else set()
                if self.dpp or mn.startswith(("v_fmac", "v_dot2c", "v_writelane", "v_mac")): self.rd |= R[0]
                if mn.startswith("v_cndmask") and len(R) == 3: self.rd |= regs_of("vcc")
        elif self.vmem:
            if "store" in mn or ("atomic" in mn):
                if mn.startswith("buffer"): self.stdata = R[0]; self.rd = set().union(*R)
                else: self.stdata = R[1]; self.rd = set().union(*R)
                if "atomic" in mn and "sc0" in self.mods: self.wr = R[0]
            elif " lds" in " " + self.mods: self.rd = set().union(*R)
            else: self.wr = R[0]; self.rd = set().union(*R[1:])
        elif self.ds:
            if mn.startswith(("ds_read", "ds_bpermute", "ds_permute", "ds_swizzle")) or "_rtn" in mn:
                self.wr = R[0]; self.rd = set().union(*R[1:])
            else: self.rd = set().union(*R)
        self.ws = 1
        if mn == "s_nop": self.ws = int(ops[0], 0) + 1
        self.branch = mn.startswith(("s_branch", "s_cbranch"))
        self.uncond = mn in ("s_branch", "s_endpgm", "s_setpc_b64")
        self.target = ops[0] if self.branch else None
def V(s): return {r for r in s if r[0] in "va"}
def S(s): return {r for r in s if r[0] == "s"}
def need(p, c):
    n = 0
    if p.valu:
        wv = V(p.wr); wsg = S(p.wr)
        if c.dpp and wv & V(c.rd): n = max(n, 2)
        if c.perml and wv & V(c.rd): n = max(n, 2)
        if c.rdlane and wv & V(c.rd): n = max(n, 1)
        if p.trans and (c.valu or c.mfma) and not c.trans and wv & V(c.rd): n = max(n, 1)
        if p.trans and c.trans and wv & V(c.rd): n = max(n, 1)
        if c.mfma and wv & V(c.rd): n = max(n, 2)
        if wsg:
            if c.valu and wsg & S(c.rd): n = max(n, 4 if c.mn.startswith(("v_readlane", "v_writelane")) else 2)
            if c.vmem and wsg & S(c.rd): n = max(n, 5)
    if p.mfma:
        big = {4: 8, 8: 12}[p.passes]; ov = {4: 6, 8: 10}[p.passes]; war = {4: 3, 8: 7}[p.passes]
        if c.mfma:
            if p.wr & c.srcAB: n = max(n, big)
            if p.wr & c.srcC and not (p.wr == c.srcC and p.passes == c.passes): n = max(n, ov)
            if p.wr & c.wr and not (p.wr == c.srcC): n = max(n, ov)
        elif c.valu:
            if p.wr & (c.rd | c.wr): n = max(n, big)
            if p.srcC & c.wr: n = max(n, war)
        elif c.vmem or c.ds:
            if p.wr & (c.rd | c.wr): n = max(n, big)
    if p.vmem and len(p.stdata) >= 3:
        if c.valu and p.stdata & c.wr: n = max(n, 2)
        elif p.stdata & c.wr: n = max(n, 1)
    if p.salu and p.ops and p.ops[0] == "m0" and (c.vmem and " lds" in " " + c.mods): n = max(n, 1)
    return n
class Prog:
    def __init__(self): self.items = []
    def __call__(self, text):
        for line in text.split("\n"):
            line = line.strip()
            if not line or line.startswith(";"): continue
            if line.endswith(":"): self.items.append(("L", line[:-1]))
            elif line.startswith("."): self.items.append(("D", line))
            else: self.items.append(("I", Ins(line)))
    def label(self, l): self.items.append(("L", l))
    def fix(self):
        MAXW = 12
        changed = True; total = 0
        while changed:
            changed = False
            it = self.items
            br = {}
            for i, (k, x) in enumerate(it):
                if k == "I" and x.branch: br.setdefault(x.target, []).append(i)
            def walk(i, dist, c, seen):
                miss = 0
                j = i - 1
                while j >= 0 and dist < MAXW:
                    k, x = it[j]
                    if k == "L":
                        for b in br.get(x, []):
                            if (b, dist) not in seen:
                                seen.add((b, dist))
                                miss = max(miss, walk(b, dist + 1, c, seen))
                    elif k == "I":
                        if x.uncond and True:
                            return miss
                        miss = max(miss, need(x, c) - dist)
                        dist += x.ws
                    j -= 1
                return miss
            for i, (k, x) in enumerate(it):
                if k != "I" or x.salu: continue
                m = walk(i, 0, x, set())
                if m > 0:
                    it.insert(i, ("I", Ins(f"s_nop {m-1}"))); changed = True; total += 1
                    break
        return total
    def text(self):
        out = []
        for k, x in self.items:
            if k == "L": out.append(x + ":")
            elif k == "D": out.append("  " + x)
            else: out.append("  " + x.text)
        return "\n".join(out) + "\n"
```

```python
import sys
sys.path.insert(0, "dev")
from asmgen import Prog
NAME = "adaLN_cond__gqa_block_cached__swiglu_ffn__decode"
HEADER = open("cdna_kernels/" + NAME + ".s.ref").read().split("; Override launch")[0]

WS_EPOCH = 0x0; WS_CNT = 0x1000; WS_MOD = 0x10000; WS_Q = 0x14000; WS_ML = 0x18000; WS_PO = 0x20000
WS_Y1 = 0xA0000; WS_Y2 = 0xB0000; WS_STAMP = 0x100000; WS_SIZE = 0x200000
L_Q = 0x0; L_DML = 0x400; L_YW = 0x500; L_RED = 0x800; L_ATT = 0x1000; L_X1 = 0x2000; L_GU = 0x2800; L_DEP = 0x4000
LDS_BYTES = 0x8000
DPPF = "row_mask:0xf bank_mask:0xf"

def gen(stamps=False, spin=200000):
    p = Prog(); A = p
    v = lambda a, n=1: f"v{a}" if n == 1 else f"v[{a}:{a+n-1}]"
    nst = [0]
    def stamp(i):
        if stamps: A(f"s_memrealtime s[{80+2*i}:{81+2*i}]")
    uid = [0]
    def L(x): uid[0] += 1; return f"L_{x}_{uid[0]}"
    def srd(d, ptr, size):
        A(f"s_mov_b32 s{d}, s{ptr}"); A(f"s_mov_b32 s{d+1}, s{ptr+1}"); A(f"s_mov_b32 s{d+2}, {size}"); A(f"s_mov_b32 s{d+3}, 0x20000")
    def transpose(src, dst):
        for j in range(4):
            for x, sel in ((0, "s60"), (1, "s61")):
                for u in range(4):
                    A(f"v_perm_b32 v{dst+(2*j+x)*4+u}, v{src+(2*u+1)*4+j}, v{src+(2*u)*4+j}, {sel}")
    def allred_row(op, r):
        for s in (8, 4, 2, 1): A(f"{op}_dpp v{r}, v{r}, v{r} row_ror:{s} {DPPF}")
    def allred_x(op, r, t):
        A(f"v_mov_b32 v{t}, v{r}"); A(f"v_permlane16_swap_b32 v{r}, v{t}"); A(f"{op} v{r}, v{r}, v{t}")
        A(f"v_mov_b32 v{t}, v{r}"); A(f"v_permlane32_swap_b32 v{r}, v{t}"); A(f"{op} v{r}, v{r}, v{t}")
    def rnd2(a, b, t):
        A(f"v_cvt_pk_bf16_f32 v{t}, v{a}, v{b}"); A(f"v_lshlrev_b32 v{a}, 16, v{t}"); A(f"v_and_b32 v{b}, s62, v{t}")
    def rnd8(a, t):
        for k in range(4): A(f"v_cvt_pk_bf16_f32 v{t+k}, v{a+2*k}, v{a+2*k+1}")
        for k in range(4): A(f"v_lshlrev_b32 v{a+2*k}, 16, v{t+k}"); A(f"v_and_b32 v{a+2*k+1}, s62, v{t+k}")
    def unpack8(src, dst):
        for k in range(4): A(f"v_lshlrev_b32 v{dst+2*k}, 16, v{src+k}"); A(f"v_and_b32 v{dst+2*k+1}, s62, v{src+k}")
    def ln_stats(X, mean, rs, t):
        A(f"v_add_f32 v{t}, v{X}, v{X+1}"); A(f"v_add_f32 v{t+1}, v{X+2}, v{X+3}"); A(f"v_add_f32 v{t+2}, v{X+4}, v{X+5}"); A(f"v_add_f32 v{t+3}, v{X+6}, v{X+7}")
        A(f"v_add_f32 v{t}, v{t}, v{t+1}"); A(f"v_add_f32 v{t+2}, v{t+2}, v{t+3}"); A(f"v_add_f32 v{mean}, v{t}, v{t+2}")
        allred_row("v_add_f32", mean); allred_x("v_add_f32", mean, t)
        A(f"v_mul_f32 v{mean}, 0x3b000000, v{mean}")
        for k in range(8): A(f"v_sub_f32 v{t+k}, v{X+k}, v{mean}")
        A(f"v_mul_f32 v{rs}, v{t}, v{t}"); A(f"v_mul_f32 v{t+8}, v{t+1}, v{t+1}")
        for k in range(2, 8, 2): A(f"v_fmac_f32 v{rs}, v{t+k}, v{t+k}"); A(f"v_fmac_f32 v{t+8}, v{t+k+1}, v{t+k+1}")
        A(f"v_add_f32 v{rs}, v{rs}, v{t+8}")
        allred_row("v_add_f32", rs); allred_x("v_add_f32", rs, t)
        A(f"v_mul_f32 v{rs}, 0x3b000000, v{rs}")
        rnd2(mean, rs, t)
        A(f"v_add_f32 v{rs}, 0x3727c5ac, v{rs}")
        A(f"v_cvt_pk_bf16_f32 v{rs}, v{rs}, v{rs}"); A(f"v_and_b32 v{rs}, s62, v{rs}")
        A(f"v_sqrt_f32 v{rs}, v{rs}")
        A(f"v_cvt_pk_bf16_f32 v{rs}, v{rs}, v{rs}"); A(f"v_and_b32 v{rs}, s62, v{rs}")
        A(f"v_rcp_f32 v{rs}, v{rs}")
    def ln_apply(X, mean, rs, t):
        for k in range(8): A(f"v_sub_f32 v{X+k}, v{X+k}, v{mean}")
        rnd8(X, t)
        for k in range(8): A(f"v_mul_f32 v{X+k}, v{X+k}, v{rs}")
        rnd8(X, t)
    def poll(loads, regs, bad):
        top = L("poll"); ok = L("ok")
        A(f"s_mov_b32 s65, {spin}")
        A(f"{top}:")
        for x in loads: A(x)
        A("s_waitcnt vmcnt(0)")
        r0, t0 = regs[0]
        A(f"v_xor_b32 v{bad}, s{56+t0}, v{r0}")
        for r, t in regs[1:]: A(f"v_bitop3_b32 v{bad}, v{bad}, v{r}, s{56+t} bitop3:0xf6")
        A(f"v_and_b32 v{bad}, 0xff, v{bad}")
        A(f"v_cmp_ne_u32 vcc, 0, v{bad}")
        A(f"s_cbranch_vccz {ok}")
        A("s_sub_u32 s65, s65, 1"); A("s_cmp_eq_u32 s65, 0"); A("s_cbranch_scc1 L_fin")
        A(f"s_branch {top}")
        A(f"{ok}:")
    def g4(r): return [(r + k, k) for k in range(4)]
    def silu(x, t):
        A(f"v_mul_f32 v{t}, 0xbfb8aa3b, v{x}"); A(f"v_exp_f32 v{t}, v{t}"); A(f"v_add_f32 v{t}, 1.0, v{t}"); A(f"v_rcp_f32 v{t}, v{t}"); A(f"v_mul_f32 v{x}, v{x}, v{t}")

    A("s_cmp_ge_u32 s2, 256"); A("s_cbranch_scc1 L_end")
    A("s_load_dwordx16 s[4:19], s[0:1], 0"); A("s_load_dwordx8 s[20:27], s[0:1], 64"); A("s_load_dwordx4 s[28:31], s[0:1], 96")
    stamp(0)
    A("v_lshrrev_b32 v2, 6, v0"); A("v_and_b32 v1, 63, v0"); A("v_readfirstlane_b32 s52, v2")
    A("v_lshrrev_b32 v2, 4, v1"); A("v_and_b32 v3, 15, v1")
    A("s_cmp_lg_u32 s52, 0"); A("s_cbranch_scc1 L_nopf")
    A("s_getpc_b64 s[66:67]"); A("L_pc:")
    A("v_lshlrev_b32 v4, 7, v1")
    A("s_mov_b32 s68, L_last-L_pc")
    for k in range(2):
        A("v_min_u32 v5, s68, v4"); A("global_load_dword v99, v5, s[66:67]"); A("v_add_u32 v4, 0x2000, v4")
    A("L_nopf:")
    A("v_bfe_u32 v4, v3, 1, 1"); A("v_lshlrev_b32 v4, 10, v4"); A("v_lshrrev_b32 v5, 2, v3"); A("v_lshl_add_u32 v4, v5, 8, v4")
    A("v_lshl_add_u32 v4, v2, 5, v4"); A("v_and_b32 v5, 1, v3"); A("v_lshl_add_u32 v4, v5, 4, v4")
    A("v_add_u32 v5, 0x1000, v4"); A("v_lshlrev_b32 v6, 4, v1"); A("v_add_u32 v7, 0x1000, v6")
    A("s_lshr_b32 s54, s2, 3"); A("s_add_u32 s53, s2, s54"); A("s_and_b32 s53, s53, 7"); A("s_lshr_b32 s55, s2, 5")
    A("s_mov_b32 s60, 0x05040100"); A("s_mov_b32 s61, 0x07060302"); A("s_mov_b32 s62, 0xffff0000"); A("s_mov_b32 s63, 0x3fb8aa3b"); A("s_mov_b32 s64, 0xff")
    A("s_and_b32 s69, s2, 31"); A("s_lshl_b32 s69, s69, 19")
    A("s_cmp_ge_u32 s52, 6"); A("s_cbranch_scc1 L_main_sched")
    A("s_lshl_b32 s70, s52, 14"); A("s_sub_u32 s70, s70, 0x4000"); A("s_add_u32 s70, s70, s69"); A("s_add_u32 s71, s70, 0x2000")
    A("s_mov_b32 s72, 0"); A("s_mov_b32 s73, 0"); A("s_branch L_sched_done")
    A("L_main_sched:")
    A("s_add_u32 s70, s52, 4"); A("s_lshl_b32 s70, s70, 13"); A("s_add_u32 s70, s70, s69"); A("s_add_u32 s71, s70, 0x4000")
    A("s_add_u32 s72, s70, 0x8000"); A("s_add_u32 s73, s69, 0x80000")
    A("L_sched_done:")
    A("s_waitcnt lgkmcnt(0)")
    A("s_load_dword s56, s[30:31], 0")
    A("s_lshl_b32 s65, s55, 24")
    A("s_add_u32 s32, s6, s65"); A("s_addc_u32 s33, s7, 0"); A("s_mov_b32 s34, 0x1000000"); A("s_mov_b32 s35, 0x20000")
    A("s_add_u32 s36, s8, s65"); A("s_addc_u32 s37, s9, 0"); A("s_mov_b32 s38, 0x1000000"); A("s_mov_b32 s39, 0x20000")
    srd(40, 30, WS_SIZE); srd(44, 10, 512*4096*2); srd(48, 4, 1024)
    def tags():
        A("s_waitcnt lgkmcnt(0)")
        A("s_add_u32 s56, s56, 1"); A("s_and_b32 s56, s56, 0xff")
        for k in range(1, 4): A(f"s_add_u32 s{56+k}, s56, {37*k}"); A(f"s_and_b32 s{56+k}, s{56+k}, 0xff")
    A("s_cmp_lt_u32 s53, 2"); A("s_cbranch_scc1 L_roleQ")
    A("s_cmp_eq_u32 s53, 4"); A("s_cbranch_scc1 L_roleM")
    A("s_cmp_lg_u32 s53, 5"); A("s_cbranch_scc1 L_kv0")
    A("s_cmp_lt_u32 s54, 16"); A("s_cbranch_scc1 L_roleM")
    A("L_kv0:")
    A("s_mov_b32 s74, 0")
    A("L_kv:")
    KA, VA, KB, VB = 128, 160, 192, 224
    def issueK(base, so):
        for grp in range(4):
            for j in range(2):
                A(f"buffer_load_dwordx4 {v(base+(grp*2+j)*4,4)}, v{4+(grp>>1)}, s[32:35], {so} offen offset:{(grp&1)*2048+j*128} nt")
    def issueV(base, so):
        for t in range(8):
            A(f"buffer_load_dwordx4 {v(base+t*4,4)}, v{6+(t>>2)}, s[36:39], {so} offen offset:{(t&3)*1024} nt")
    A("s_cmp_eq_u32 s52, 0"); A("s_cbranch_scc1 L_kvskip")
    issueK(KA, "s70"); issueV(VA, "s70"); issueK(KB, "s71"); issueV(VB, "s71")
    A("L_kvskip:")
    A("s_cmp_lg_u32 s74, 0"); A("s_cbranch_scc1 L_havetags")
    tags()
    A("L_havetags:")
    stamp(1)
    A("s_cmp_lg_u32 s52, 0"); A("s_cbranch_scc1 L_waitq")
    A("s_setprio 3")
    A("v_mov_b32 v16, 0"); A("v_mov_b32 v17, 0"); A("v_lshlrev_b32 v18, 3, v1"); A(f"ds_write_b64 v18, v[16:17] offset:{L_YW}")
    A("v_lshlrev_b32 v18, 5, v1"); A("s_lshl_b32 s66, s55, 11"); A(f"s_add_u32 s66, s66, {WS_Q}")
    poll([f"buffer_load_dwordx4 v[20:23], v18, s[40:43], s66 offen sc1", f"buffer_load_dwordx4 v[24:27], v18, s[40:43], s66 offen offset:16 sc1"],
         g4(20) + g4(24), 19)
    for k in range(4): A(f"v_perm_b32 v{28+k}, v{21+2*k}, v{20+2*k}, s61")
    A(f"ds_write_b128 v6, v[28:31] offset:{L_Q}")
    A("s_waitcnt lgkmcnt(0)")
    A("s_setprio 0")
    A("L_waitq:")
    A("s_barrier")
    stamp(2)
    A("s_cmp_eq_u32 s52, 0"); A("s_cbranch_scc1 L_tailprep")
    A("v_and_b32 v16, 3, v3"); A("v_lshlrev_b32 v16, 8, v16"); A("v_lshl_add_u32 v16, v2, 5, v16"); A("v_bfe_u32 v17, v3, 2, 1"); A("v_lshl_add_u32 v16, v17, 4, v16")
    A(f"ds_read_b128 v[8:11], v16 offset:{L_Q}"); A(f"ds_read_b128 v[12:15], v16 offset:{L_Q+128}")
    for k in range(32): A(f"v_mov_b32 v{32+k}, 0")
    M, ML, LS = 84, 85, 86
    A(f"v_mov_b32 v{M}, 0xff800000"); A(f"v_mov_b32 v{ML}, 0"); A(f"v_mov_b32 v{LS}, 0")
    A("v_mov_b32 v87, 0"); A("v_mov_b32 v88, 0")
    A("s_waitcnt lgkmcnt(0)")
    def unit(X, KX, VX, sx, sy):
        A("s_waitcnt vmcnt(24)")
        A(f"s_cmp_lg_u32 {sy}, -1"); A(f"s_cbranch_scc1 L_w1{X}"); A("s_waitcnt vmcnt(8)"); A(f"L_w1{X}:")
        for j in range(2):
            for grp in range(4):
                c = "0" if j == 0 else v(16+4*grp, 4)
                A(f"v_mfma_f32_16x16x32_bf16 {v(16+4*grp,4)}, {v(KX+(grp*2+j)*4,4)}, {v(8+4*j,4)}, {c}")
        A(f"s_mov_b32 {sx}, -1"); A("s_cmp_ge_u32 s72, s73"); A(f"s_cbranch_scc1 L_nk{X}")
        A(f"s_mov_b32 {sx}, s72"); A("s_add_u32 s72, s72, 0x4000")
        issueK(KX, sx)
        A(f"L_nk{X}:")
        for b in range(4):
            D = 16 + 4 * b
            for x in range(2):
                if b % 2 == 0: A(f"v_add_f32_dpp v{87+x}, v{D+2*x+1}, v{D+2*x} row_shl:4 row_mask:0xf bank_mask:{1<<b:#x}")
                else: A(f"v_add_f32_dpp v{87+x}, v{D+2*x}, v{D+2*x+1} row_shr:4 row_mask:0xf bank_mask:{1<<b:#x}")
        A("v_cvt_pk_bf16_f32 v89, v87, v88"); A("v_lshlrev_b32 v90, 16, v89"); A("v_and_b32 v91, s62, v89")
        A("v_mul_f32 v90, 0x3db504f3, v90"); A("v_mul_f32 v91, 0x3db504f3, v91")
        A("v_cvt_pk_bf16_f32 v89, v90, v91"); A("v_lshlrev_b32 v90, 16, v89"); A("v_and_b32 v91, s62, v89")
        A("v_max_f32 v92, v90, v91"); A(f"v_cmp_gt_f32 vcc, v92, v{M}"); A(f"s_cbranch_vccz L_nr{X}")
        A(f"v_max_f32 v92, v92, v{M}")
        A(f"v_max_f32_dpp v92, v92, v92 row_ror:4 {DPPF}"); A(f"v_max_f32_dpp v92, v92, v92 row_ror:8 {DPPF}")
        allred_x("v_max_f32", 92, 93)
        A(f"v_sub_f32 v93, v{M}, v92"); A("v_mul_f32 v93, s63, v93"); A("v_exp_f32 v94, v93")
        A(f"v_mov_b32 v{M}, v92"); A(f"v_mul_f32 v{ML}, s63, v92"); A(f"v_mul_f32 v{LS}, v{LS}, v94")
        for k in range(16): A(f"v_pk_mul_f32 {v(32+2*k,2)}, {v(32+2*k,2)}, v[94:95] op_sel_hi:[1,0]")
        A(f"L_nr{X}:")
        A(f"v_fma_f32 v90, v90, s63, -v{ML}"); A(f"v_fma_f32 v91, v91, s63, -v{ML}")
        A("v_exp_f32 v90, v90"); A("v_exp_f32 v91, v91")
        A(f"v_add_f32 v{LS}, v{LS}, v90"); A("v_cvt_pk_bf16_f32 v64, v90, v91"); A(f"v_add_f32 v{LS}, v{LS}, v91")
        for r in range(1, 4): A(f"v_mov_b32_dpp v{64+r}, v64 row_shl:{4*r} {DPPF} bound_ctrl:0")
        A("s_waitcnt vmcnt(24)")
        A(f"s_cmp_lg_u32 {sx}, -1"); A(f"s_cbranch_scc1 L_w2{X}"); A("s_waitcnt vmcnt(16)")
        A(f"s_cmp_lg_u32 {sy}, -1"); A(f"s_cbranch_scc1 L_w2{X}"); A("s_waitcnt vmcnt(0)"); A(f"L_w2{X}:")
        for j in range(4):
            T = 68 + (j & 1) * 8
            for x, sel in ((0, "s60"), (1, "s61")):
                for u in range(4):
                    A(f"v_perm_b32 v{T+4*x+u}, v{VX+(2*u+1)*4+j}, v{VX+(2*u)*4+j}, {sel}")
            if j > 0:
                Tp = 68 + ((j-1) & 1) * 8
                for x in range(2):
                    e = 2*(j-1)+x; A(f"v_mfma_f32_16x16x32_bf16 {v(32+4*e,4)}, {v(Tp+4*x,4)}, v[64:67], {v(32+4*e,4)}")
        A(f"s_cmp_eq_u32 {sx}, -1"); A(f"s_cbranch_scc1 L_nv{X}")
        issueV(VX, sx)
        A(f"L_nv{X}:")
        for x in range(2):
            e = 6+x; A(f"v_mfma_f32_16x16x32_bf16 {v(32+4*e,4)}, {v(76+4*x,4)}, v[64:67], {v(32+4*e,4)}")
        A(f"s_cmp_eq_u32 {sy}, -1"); A("s_cbranch_scc1 L_deposit")
    A("L_loop:")
    unit("A", KA, VA, "s70", "s71")
    unit("B", KB, VB, "s71", "s70")
    A("s_branch L_loop")
    A("L_deposit:")
    stamp(3)
    A(f"v_add_f32_dpp v{LS}, v{LS}, v{LS} row_ror:4 {DPPF}"); A(f"v_add_f32_dpp v{LS}, v{LS}, v{LS} row_ror:8 {DPPF}")
    allred_x("v_add_f32", LS, 93)
    A(f"v_mov_b32 v{ML}, v{LS}")
    A("s_lshl_b32 s66, s52, 11"); A("v_lshlrev_b32 v16, 9, v3"); A("v_lshl_add_u32 v16, v2, 4, v16"); A("v_add_u32 v16, s66, v16")
    A("s_lshl_b32 s66, s52, 5"); A("v_lshlrev_b32 v17, 3, v3"); A("v_add_u32 v17, s66, v17")
    A("s_mov_b32 exec_lo, 0x000f000f"); A("s_mov_b32 exec_hi, 0x000f000f")
    for e in range(8): A(f"ds_write_b128 v16, {v(32+4*e,4)} offset:{L_DEP+64*e}")
    A(f"ds_write_b64 v17, v[84:85] offset:{L_DML}")
    A("s_mov_b64 exec, -1")
    A("L_tailprep:")
    A("s_cmp_ge_u32 s52, 4"); A("s_cbranch_scc1 L_barE")
    A("s_cmp_ge_u32 s53, 4"); A("s_cbranch_scc1 L_prepW")
    A("s_cmp_lt_u32 s53, 2"); A("s_cbranch_scc1 L_barE")
    A("s_cmp_ge_u32 s54, 28"); A("s_cbranch_scc1 L_barE")
    A("s_lshl_b32 s75, s54, 1"); A("s_add_u32 s75, s75, s53"); A("s_sub_u32 s75, s75, 2")
    srd(44, 16, 512*1792*2); srd(48, 18, 512*1792*2)
    A("v_lshrrev_b32 v16, 3, v3"); A("v_lshl_add_u32 v16, v2, 1, v16"); A("s_mov_b32 s66, 28672"); A("v_mul_lo_u32 v16, v16, s66")
    A("v_and_b32 v17, 3, v3"); A("v_lshl_add_u32 v16, v17, 4, v16")
    A(f"s_mul_i32 s66, s52, {128*3584}"); A("s_lshl_b32 s67, s75, 6"); A("s_add_u32 s66, s66, s67")
    for blk, raw in ((1, 160), (0, 128)):
        for mat, msk, sr in ((0, 0x0f0f0f0f, "s[44:47]"), (1, 0xf0f0f0f0, "s[48:51]")):
            A(f"s_mov_b32 exec_lo, {msk:#x}"); A(f"s_mov_b32 exec_hi, {msk:#x}")
            for t in range(8):
                A(f"s_add_u32 s67, s66, {(blk*64+t)*3584}")
                A(f"buffer_load_dwordx4 {v(raw+4*t,4)}, v16, {sr}, s67 offen nt")
    A("s_mov_b64 exec, -1")
    srd(44, 20, 1792*512*2)
    A("v_lshlrev_b32 v17, 13, v2"); A("v_lshl_add_u32 v17, v3, 4, v17"); A("v_add_u32 v18, 0x1000, v17")
    A("s_lshl_b32 s66, s75, 15"); A("s_lshl_b32 s67, s52, 8"); A("s_add_u32 s66, s66, s67")
    for t in range(8): A(f"buffer_load_dwordx4 {v(96+4*t,4)}, v{17+(t>>2)}, s[44:47], s66 offen offset:{(t&3)*1024} nt")
    A("v_lshrrev_b32 v19, 1, v3"); A("s_lshl_b32 s66, s52, 1"); A("v_xor_b32 v19, s66, v19"); A("v_lshlrev_b32 v19, 6, v19")
    A("v_lshl_add_u32 v19, v2, 4, v19"); A("v_and_b32 v20, 1, v3"); A("v_lshl_add_u32 v19, v20, 3, v19")
    srd(48, 4, 1024)
    A("v_lshlrev_b32 v20, 1, v19"); A("buffer_load_dwordx4 v[24:27], v20, s[48:51], 0 offen")
    A("v_lshlrev_b32 v9, 2, v19")
    A("v_and_b32 v10, 3, v1"); A("v_lshlrev_b32 v10, 4, v10"); A("s_lshl_b32 s66, s75, 8"); A("s_lshl_b32 s67, s52, 6"); A("s_add_u32 s66, s66, s67")
    A("s_and_b32 s66, s66, 0x7ff"); A("v_add_u32 v10, s66, v10")
    A(f"s_mov_b32 s66, {WS_MOD+2*2048}"); A(f"s_mov_b32 s67, {WS_MOD+4*2048}")
    GA, SB, CB, GB, XX = 32, 40, 48, 56, 60
    poll([f"buffer_load_dwordx4 {v(GA,4)}, v9, s[40:43], s66 offen sc1", f"buffer_load_dwordx4 {v(GA+4,4)}, v9, s[40:43], s66 offen offset:16 sc1",
          f"buffer_load_dwordx4 {v(SB,4)}, v9, s[40:43], s66 offen offset:2048 sc1", f"buffer_load_dwordx4 {v(SB+4,4)}, v9, s[40:43], s66 offen offset:2064 sc1",
          f"buffer_load_dwordx4 {v(CB,4)}, v9, s[40:43], s67 offen sc1", f"buffer_load_dwordx4 {v(CB+4,4)}, v9, s[40:43], s67 offen offset:16 sc1",
          f"buffer_load_dwordx4 {v(GB,4)}, v10, s[40:43], s67 offen offset:2048 sc1"],
         sum([g4(32+4*k) for k in range(7)], []), 21)
    for k in range(28): A(f"v_and_b32 v{32+k}, s62, v{32+k}")
    for k in range(8): A(f"v_add_f32 v{CB+k}, 1.0, v{CB+k}")
    rnd8(CB, 28)
    unpack8(24, XX)
    transpose(96, 224); transpose(160, 192); transpose(128, 160)
    A("s_branch L_barE")
    A("L_prepW:")
    srd(44, 12, 4096*512*2)
    A("v_and_b32 v16, 1, v2"); A("v_lshlrev_b32 v16, 16, v16"); A("v_lshrrev_b32 v17, 1, v2"); A("v_lshl_add_u32 v16, v17, 10, v16"); A("v_lshl_add_u32 v16, v3, 4, v16")
    A("s_lshl_b32 s66, s54, 17"); A("s_lshl_b32 s67, s52, 11"); A("s_add_u32 s66, s66, s67"); A("s_sub_u32 s67, s53, 4"); A("s_lshl_b32 s67, s67, 8"); A("s_add_u32 s66, s66, s67")
    for t in range(8):
        A(f"buffer_load_dwordx4 {v(128+4*t,4)}, v16, s[44:47], s66 offen nt"); A("s_add_u32 s66, s66, 0x2000")
    A("s_waitcnt vmcnt(0)")
    transpose(128, 160)
    A("L_barE:")
    A("s_waitcnt lgkmcnt(0)")
    stamp(4)
    A("s_barrier")
    stamp(5)
    A("s_cmp_lt_u32 s52, 4"); A("s_cbranch_scc1 L_tail")
    A("s_cmp_lt_u32 s52, 6"); A("s_cbranch_scc1 L_fin")
    A("v_and_b32 v16, 127, v0"); A("v_lshlrev_b32 v17, 4, v16"); A("v_lshrrev_b32 v18, 5, v16"); A("v_lshlrev_b32 v19, 3, v18")
    for w in range(1, 8): A(f"ds_read_b64 {v(18+2*w,2)}, v19 offset:{L_DML+32*w}")
    for w in range(1, 8): A(f"ds_read_b128 {v(32+4*w,4)}, v17 offset:{L_DEP+2048*w}")
    A("v_lshlrev_b32 v70, 14, v18"); A("v_and_b32 v71, 31, v16"); A("v_lshl_add_u32 v70, v71, 4, v70"); A("v_lshlrev_b32 v72, 8, v18")
    A("s_and_b32 s68, s2, 31")
    A("s_lshl_b32 s66, s55, 16"); A("s_lshl_b32 s67, s68, 9"); A("s_add_u32 s66, s66, s67"); A(f"s_add_u32 s66, s66, {WS_PO}")
    A("s_lshl_b32 s67, s55, 10"); A("s_lshl_b32 s68, s68, 3"); A("s_add_u32 s67, s67, s68"); A(f"s_add_u32 s67, s67, {WS_ML}")
    for k in range(4): A(f"v_mov_b32 v{76+k}, s{56+k}")
    A("s_waitcnt lgkmcnt(7)")
    A("v_max3_f32 v64, v20, v22, v24"); A("v_max3_f32 v64, v64, v26, v28"); A("v_max3_f32 v64, v64, v30, v32")
    for w in range(1, 8): A(f"v_sub_f32 v{18+2*w}, v{18+2*w}, v64")
    for w in range(1, 8): A(f"v_mul_f32 v{18+2*w}, s63, v{18+2*w}")
    for w in range(1, 8): A(f"v_exp_f32 v{18+2*w}, v{18+2*w}")
    A("v_mul_f32 v65, v20, v21")
    for w in range(2, 8): A(f"v_fmac_f32 v65, v{18+2*w}, v{19+2*w}")
    A("s_waitcnt lgkmcnt(0)")
    for k in range(4): A(f"v_mul_f32 v{66+k}, v20, v{36+k}")
    for w in range(2, 8):
        for k in range(4): A(f"v_fmac_f32 v{66+k}, v{18+2*w}, v{32+4*w+k}")
    for k in range(4): A(f"v_bfi_b32 v{80+k}, s64, v{76+k}, v{66+k}")
    A("buffer_store_dwordx4 v[80:83], v70, s[40:43], s66 offen sc1")
    A("v_bfi_b32 v64, s64, v76, v64"); A("v_bfi_b32 v65, s64, v77, v65")
    A("s_mov_b32 exec_lo, 1"); A("s_mov_b32 exec_hi, 1")
    A("buffer_store_dwordx2 v[64:65], v72, s[40:43], s67 offen sc1")
    A("s_mov_b64 exec, -1")
    stamp(6)
    A("s_branch L_fin")
    A("L_tail:")
    for k in range(4): A(f"v_mov_b32 v{4+k}, s{56+k}")
    A("s_cmp_ge_u32 s53, 4"); A("s_cbranch_scc1 L_W")
    A("s_cmp_lt_u32 s53, 2"); A("s_cbranch_scc1 L_fin")
    A("s_cmp_ge_u32 s54, 28"); A("s_cbranch_scc1 L_fin")
    A("v_and_b32 v16, 127, v0"); A("v_lshlrev_b32 v16, 4, v16"); A("v_add_u32 v17, 0x1000, v16")
    A("s_lshr_b32 s66, s52, 1"); A("s_lshl_b32 s68, s66, 11"); A("s_lshl_b32 s66, s66, 15"); A(f"s_add_u32 s66, s66, {WS_Y1}")
    for k in range(1, 4): A(f"s_add_u32 s{69+k}, s66, {k*0x2000}")
    GR = 68
    regs = list(range(68, 132))
    lds_ = []
    for k in range(16):
        so = "s66" if k < 4 else f"s{69+(k>>2)}"
        lds_.append(f"buffer_load_dwordx4 {v(GR+4*k,4)}, v{16+((k>>1)&1)}, s[40:43], {so} offen offset:{(k&1)*2048} sc1")
    poll(lds_, sum([g4(GR+4*k) for k in range(16)], []), 21)
    stamp(6)
    for step in (32, 16, 8, 4):
        for k in range(0, step, 2): A(f"v_pk_add_f32 {v(GR+k,2)}, {v(GR+k,2)}, {v(GR+step+k,2)}")
    A("v_add_u32 v16, s68, v16")
    A(f"ds_write_b128 v16, {v(GR,4)} offset:{L_ATT}")
    A("s_waitcnt lgkmcnt(0)"); A("s_barrier")
    A(f"ds_read_b128 v[68:71], v9 offset:{L_ATT}"); A(f"ds_read_b128 v[72:75], v9 offset:{L_ATT+16}")
    A(f"ds_read_b128 v[76:79], v9 offset:{L_ATT+2048}"); A(f"ds_read_b128 v[80:83], v9 offset:{L_ATT+2048+16}")
    A("s_waitcnt lgkmcnt(0)")
    for k in range(0, 8, 2): A(f"v_pk_add_f32 {v(68+k,2)}, {v(68+k,2)}, {v(76+k,2)}")
    rnd8(68, 84)
    for k in range(8): A(f"v_mul_f32 v{68+k}, v{GA+k}, v{68+k}")
    rnd8(68, 84)
    for k in range(8): A(f"v_add_f32 v{68+k}, v{XX+k}, v{68+k}")
    rnd8(68, 84)
    A(f"ds_write_b128 v9, v[68:71] offset:{L_X1}"); A(f"ds_write_b128 v9, v[72:75] offset:{L_X1+16}")
    ln_stats(68, 22, 23, 84)
    ln_apply(68, 22, 23, 84)
    for k in range(8): A(f"v_mul_f32 v{68+k}, v{68+k}, v{CB+k}")
    rnd8(68, 84)
    for k in range(8): A(f"v_add_f32 v{68+k}, v{68+k}, v{SB+k}")
    for k in range(4): A(f"v_cvt_pk_bf16_f32 v{24+k}, v{68+2*k}, v{69+2*k}")
    for e in range(8):
        A(f"v_mfma_f32_16x16x32_bf16 {v(68+4*e,4)}, v[24:27], {v(160+4*e,4)}, 0")
        A(f"v_mfma_f32_16x16x32_bf16 {v(100+4*e,4)}, v[24:27], {v(192+4*e,4)}, 0")
    for e in range(8):
        A(f"v_add_f32 v{68+4*e}, v{68+4*e}, v{100+4*e+2}"); A(f"v_add_f32 v{68+4*e+1}, v{68+4*e+1}, v{100+4*e+3}")
    for e in range(8): A(f"v_add_f32_dpp v{132+e}, v{68+4*e+1}, v{68+4*e} row_shl:8 {DPPF} bound_ctrl:0")
    A("s_lshl_b32 s66, s52, 8"); A("v_lshlrev_b32 v16, 5, v1"); A("v_add_u32 v16, s66, v16")
    A("s_mov_b64 exec, 0xff")
    A(f"ds_write_b128 v16, v[132:135] offset:{L_GU}"); A(f"ds_write_b128 v16, v[136:139] offset:{L_GU+16}")
    A("s_mov_b64 exec, -1")
    A("v_and_b32 v16, 7, v3"); A("v_lshl_add_u32 v16, v2, 3, v16"); A("v_lshlrev_b32 v16, 2, v16"); A(f"v_add_u32 v16, {L_GU}, v16")
    A("s_waitcnt lgkmcnt(0)"); A("s_barrier")
    for w in range(4): A(f"ds_read2_b32 {v(68+2*w,2)}, v16 offset0:{64*w} offset1:{64*w+32}")
    A("s_waitcnt lgkmcnt(0)")
    A("v_pk_add_f32 v[68:69], v[68:69], v[70:71]"); A("v_pk_add_f32 v[72:73], v[72:73], v[74:75]"); A("v_pk_add_f32 v[68:69], v[68:69], v[72:73]")
    rnd2(68, 69, 70)
    silu(68, 70)
    A("v_cvt_pk_bf16_f32 v68, v68, v68"); A("v_and_b32 v68, s62, v68")
    A("v_mul_f32 v68, v68, v69")
    A(f"v_mov_b32_dpp v69, v68 row_shl:1 {DPPF} bound_ctrl:0")
    A("v_cvt_pk_bf16_f32 v24, v68, v69")
    for r in range(1, 4): A(f"v_mov_b32_dpp v{24+r}, v24 row_shl:{2*r} {DPPF} bound_ctrl:0")
    for e in range(8): A(f"v_mfma_f32_16x16x32_bf16 {v(68+4*e,4)}, v[24:27], {v(224+4*e,4)}, 0")
    A("v_lshlrev_b32 v16, 5, v3"); A("v_lshrrev_b32 v17, 1, v2"); A("v_lshl_add_u32 v16, v17, 4, v16")
    A("s_lshl_b32 s66, s75, 11"); A("s_lshl_b32 s67, s52, 9"); A("s_add_u32 s66, s66, s67"); A(f"s_add_u32 s66, s66, {WS_Y2}")
    for k in range(4): A(f"v_mov_b32_dpp v{68+4*k}, v{84+4*k} quad_perm:[0,1,2,3] row_mask:0x4 bank_mask:0xf")
    for k in range(4): A(f"v_bfi_b32 v{100+k}, s64, v{4+k}, v{68+4*k}")
    A("s_mov_b32 exec_lo, 0xffff"); A("s_mov_b32 exec_hi, 0xffff")
    A("buffer_store_dwordx4 v[100:103], v16, s[40:43], s66 offen sc1")
    A("s_mov_b64 exec, -1")
    stamp(7)
    A("s_cmp_ge_u32 s75, 8"); A("s_cbranch_scc1 L_fin")
    A(f"ds_read_b128 v[24:27], v10 offset:{L_X1}")
    A("v_lshrrev_b32 v16, 2, v1"); A("v_and_b32 v17, 7, v16"); A("v_lshl_add_u32 v16, v16, 11, v10"); A("v_lshl_add_u32 v17, v17, 11, v10")
    A(f"s_mov_b32 s66, {WS_Y2}"); A(f"s_mov_b32 s67, {WS_Y2+0x8000}"); A(f"s_mov_b32 s68, {WS_Y2+0x10000}"); A(f"s_mov_b32 s69, {WS_Y2+0x18000}")
    srd(44, 26, 1024)
    poll([f"buffer_load_dwordx4 {v(68+4*k,4)}, v{16 if k < 3 else 17}, s[40:43], s{66+k} offen sc1" for k in range(4)], sum([g4(68+4*k) for k in range(4)], []), 21)
    stamp(8)
    for k in (0, 2): A(f"v_pk_add_f32 {v(68+k,2)}, {v(68+k,2)}, {v(72+k,2)}")
    A("s_mov_b32 exec_hi, 0")
    for k in (0, 2): A(f"v_pk_add_f32 {v(76+k,2)}, {v(76+k,2)}, {v(80+k,2)}")
    A("s_mov_b64 exec, -1")
    for k in (0, 2): A(f"v_pk_add_f32 {v(68+k,2)}, {v(68+k,2)}, {v(76+k,2)}")
    for s in (4, 8):
        for k in range(4): A(f"v_add_f32_dpp v{68+k}, v{68+k}, v{68+k} row_ror:{s} {DPPF}")
    for sw in ("v_permlane16_swap_b32", "v_permlane32_swap_b32"):
        for k in range(4): A(f"v_mov_b32 v{72+k}, v{68+k}")
        for k in range(4): A(f"{sw} v{68+k}, v{72+k}")
        for k in range(4): A(f"v_add_f32 v{68+k}, v{68+k}, v{72+k}")
    rnd2(68, 69, 72); rnd2(70, 71, 73)
    for k in range(4): A(f"v_mul_f32 v{68+k}, v{68+k}, v{GB+k}")
    rnd2(68, 69, 72); rnd2(70, 71, 73)
    A("s_waitcnt lgkmcnt(0)")
    for k in range(4): A(f"v_add_f32 v{68+k}, v{68+k}, v{24+k}")
    A("v_cvt_pk_bf16_f32 v72, v68, v69"); A("v_cvt_pk_bf16_f32 v73, v70, v71")
    A("v_lshrrev_b32 v16, 1, v10")
    A("s_mov_b64 exec, 0xf")
    A("buffer_store_dwordx2 v[72:73], v16, s[44:47], 0 offen")
    A("s_or_b32 s66, s75, s52"); A("s_cmp_lg_u32 s66, 0"); A("s_cbranch_scc1 L_zdone")
    A("s_mov_b64 exec, 1"); A("v_mov_b32 v16, 0")
    A("buffer_store_dword v4, v16, s[40:43], 0 offen sc1")
    A("L_zdone:")
    A("s_mov_b64 exec, -1")
    stamp(9)
    A("s_branch L_fin")
    A("L_W:")
    A("v_lshlrev_b32 v16, 9, v3"); A("v_lshl_add_u32 v16, v2, 5, v16"); A("v_lshlrev_b32 v17, 3, v3")
    A("s_lshl_b32 s66, s54, 14"); A("s_lshl_b32 s67, s52, 7"); A("s_add_u32 s66, s66, s67"); A(f"s_add_u32 s66, s66, {WS_PO}"); A("s_add_u32 s67, s66, 0x2000")
    A("s_lshl_b32 s68, s54, 8"); A(f"s_add_u32 s68, s68, {WS_ML}")
    poll(["buffer_load_dwordx2 v[24:25], v17, s[40:43], s68 offen sc1", "buffer_load_dwordx2 v[26:27], v17, s[40:43], s68 offen offset:128 sc1",
          "buffer_load_dwordx4 v[32:35], v16, s[40:43], s66 offen sc1", "buffer_load_dwordx4 v[36:39], v16, s[40:43], s66 offen offset:16 sc1",
          "buffer_load_dwordx4 v[40:43], v16, s[40:43], s67 offen sc1", "buffer_load_dwordx4 v[44:47], v16, s[40:43], s67 offen offset:16 sc1"],
         [(24,0),(25,1),(26,0),(27,1)] + g4(32) + g4(36) + g4(40) + g4(44), 21)
    stamp(6)
    A("v_and_b32 v24, s62, v24"); A("v_and_b32 v26, s62, v26"); A("v_max_f32 v28, v24, v26")
    allred_row("v_max_f32", 28)
    A("v_sub_f32 v24, v24, v28"); A("v_sub_f32 v26, v26, v28"); A("v_mul_f32 v24, s63, v24"); A("v_mul_f32 v26, s63, v26")
    A("v_exp_f32 v24, v24"); A("v_exp_f32 v26, v26")
    A("v_mul_f32 v48, v24, v25"); A("v_fmac_f32 v48, v26, v27")
    for k in range(8): A(f"v_mul_f32 v{32+k}, v24, v{32+k}")
    for k in range(8): A(f"v_fmac_f32 v{32+k}, v26, v{40+k}")
    for s in (8, 4, 2, 1):
        for r in [48] + list(range(32, 40)): A(f"v_add_f32_dpp v{r}, v{r}, v{r} row_ror:{s} {DPPF}")
    A("v_rcp_f32 v48, v48")
    for k in range(8): A(f"v_mul_f32 v{32+k}, v{32+k}, v48")
    for k in range(4): A(f"v_cvt_pk_bf16_f32 v{24+k}, v{32+2*k}, v{33+2*k}")
    for e in range(8): A(f"v_mfma_f32_16x16x32_bf16 {v(68+4*e,4)}, v[24:27], {v(160+4*e,4)}, 0")
    A("v_lshlrev_b32 v16, 5, v3"); A("v_lshl_add_u32 v16, v2, 3, v16")
    for g in range(1, 4):
        for x in range(2): A(f"v_mov_b32_dpp v{68+4*x}, v{68+4*(2*g+x)} quad_perm:[0,1,2,3] row_mask:{1<<g:#x} bank_mask:0xf")
    A(f"ds_add_f32 v16, v68 offset:{L_YW}"); A(f"ds_add_f32 v16, v72 offset:{L_YW+4}")
    A("v_lshlrev_b32 v16, 4, v1")
    A("s_lshl_b32 s66, s54, 11"); A("s_sub_u32 s67, s53, 4"); A("s_lshl_b32 s67, s67, 9"); A("s_add_u32 s66, s66, s67"); A(f"s_add_u32 s66, s66, {WS_Y1}")
    A("s_waitcnt lgkmcnt(0)"); A("s_barrier")
    A("s_cmp_lg_u32 s52, 0"); A("s_cbranch_scc1 L_fin")
    A("s_mov_b32 exec_hi, 0")
    A(f"ds_read_b128 v[32:35], v16 offset:{L_YW}")
    A("s_waitcnt lgkmcnt(0)")
    for k in range(4): A(f"v_bfi_b32 v{32+k}, s64, v{4+k}, v{32+k}")
    A("buffer_store_dwordx4 v[32:35], v16, s[40:43], s66 offen sc1")
    A("s_mov_b64 exec, -1")
    stamp(7)
    A("s_branch L_fin")
    def mq_tail(lbl):
        for e in range(8): A(f"v_mfma_f32_16x16x32_bf16 {v(32+4*e,4)}, v[24:27], {v(160+4*e,4)}, 0")
        A("s_lshl_b32 s66, s52, 8"); A("v_lshlrev_b32 v16, 5, v1"); A("v_add_u32 v16, s66, v16")
        for e in range(8): A(f"v_add_f32_dpp v{68+e}, v{32+4*e+1}, v{32+4*e} row_shl:8 {DPPF} bound_ctrl:0")
        A("s_mov_b64 exec, 0xff")
        A(f"ds_write_b128 v16, v[68:71] offset:{L_RED}"); A(f"ds_write_b128 v16, v[72:75] offset:{L_RED+16}")
        A("s_mov_b64 exec, -1")
        A("v_lshlrev_b32 v16, 2, v1"); A(f"v_add_u32 v17, {L_RED}, v16")
        A("v_and_b32 v18, 3, v1"); A("v_mul_u32_u24 v18, 37, v18"); A("v_add_u32 v18, s56, v18"); A("v_and_b32 v18, 0xff, v18")
        A("s_waitcnt lgkmcnt(0)"); A("s_barrier")
        A("s_mov_b32 s74, 1")
        A("s_cmp_lg_u32 s52, 0"); A("s_cbranch_scc1 L_kv")
        for w in range(4): A(f"ds_read2st64_b32 {v(68+2*w,2)}, v17 offset0:{2*w} offset1:{2*w+1}")
        A("s_waitcnt lgkmcnt(0)")
        A("v_pk_add_f32 v[68:69], v[68:69], v[70:71]"); A("v_pk_add_f32 v[72:73], v[72:73], v[74:75]"); A("v_pk_add_f32 v[68:69], v[68:69], v[72:73]")
        A("v_add_f32 v68, v68, v69")
        A("v_cvt_pk_bf16_f32 v68, v68, v68"); A("v_and_or_b32 v68, v68, s62, v18")
        A("buffer_store_dword v68, v16, s[40:43], s76 offen sc1")
        stamp(10)
        A("s_branch L_kv")
    def mq_load(rs):
        A("v_lshrrev_b32 v16, 3, v3"); A("v_lshl_add_u32 v16, v2, 1, v16"); A(f"s_mov_b32 s67, {8*rs}"); A("v_mul_lo_u32 v16, v16, s67")
        A("v_and_b32 v17, 7, v3"); A("v_lshl_add_u32 v16, v17, 4, v16")
        A(f"s_mul_i32 s67, s52, {64*rs}"); A("s_add_u32 s66, s66, s67")
        for t in range(8):
            A(f"buffer_load_dwordx4 {v(128+4*t,4)}, v16, s[44:47], s66 offen nt"); A(f"s_add_u32 s66, s66, {rs}")
        A("s_lshl_b32 s67, s52, 6"); A("v_and_b32 v19, 1, v3"); A("v_lshlrev_b32 v19, 3, v19"); A("v_lshl_add_u32 v19, v2, 4, v19"); A("v_add_u32 v19, s67, v19")
        A("v_lshlrev_b32 v20, 1, v19")
    A("L_roleM:")
    A("s_sub_u32 s66, s53, 4"); A("s_lshl_b32 s66, s66, 5"); A("s_add_u32 s66, s66, s54")
    A("s_lshl_b32 s76, s66, 8"); A(f"s_add_u32 s76, s76, {WS_MOD}"); A("s_lshl_b32 s66, s66, 7")
    srd(44, 24, 512*3072*2); srd(48, 22, 1024)
    mq_load(6144)
    A("buffer_load_dwordx4 v[24:27], v20, s[48:51], 0 offen")
    tags()
    A("s_waitcnt vmcnt(0)")
    unpack8(24, 68)
    for k in range(8): silu(68+k, 76+k)
    for k in range(4): A(f"v_cvt_pk_bf16_f32 v{24+k}, v{68+2*k}, v{69+2*k}")
    transpose(128, 160)
    A("s_branch L_mqtail")
    A("L_roleQ:")
    A("s_lshl_b32 s66, s54, 1"); A("s_add_u32 s66, s66, s53")
    A("s_lshl_b32 s76, s66, 8"); A(f"s_add_u32 s76, s76, {WS_Q}"); A("s_lshl_b32 s66, s66, 7")
    mq_load(8192)
    A("buffer_load_dwordx4 v[24:27], v20, s[48:51], 0 offen"); A("buffer_load_dwordx4 v[28:31], v6, s[48:51], 0 offen")
    tags()
    A("s_waitcnt vmcnt(0)")
    unpack8(28, 68); ln_stats(68, 22, 23, 84)
    unpack8(24, 68); ln_apply(68, 22, 23, 84)
    transpose(128, 160)
    A("v_lshlrev_b32 v20, 2, v19"); A(f"s_mov_b32 s66, {WS_MOD}")
    poll(["buffer_load_dwordx4 v[32:35], v20, s[40:43], s66 offen sc1", "buffer_load_dwordx4 v[36:39], v20, s[40:43], s66 offen offset:16 sc1",
          "buffer_load_dwordx4 v[40:43], v20, s[40:43], s66 offen offset:2048 sc1", "buffer_load_dwordx4 v[44:47], v20, s[40:43], s66 offen offset:2064 sc1"],
         g4(32) + g4(36) + g4(40) + g4(44), 21)
    for k in range(16): A(f"v_and_b32 v{32+k}, s62, v{32+k}")
    for k in range(8): A(f"v_add_f32 v{40+k}, 1.0, v{40+k}")
    rnd8(40, 84)
    for k in range(8): A(f"v_mul_f32 v{68+k}, v{68+k}, v{40+k}")
    rnd8(68, 84)
    for k in range(8): A(f"v_add_f32 v{68+k}, v{68+k}, v{32+k}")
    for k in range(4): A(f"v_cvt_pk_bf16_f32 v{24+k}, v{68+2*k}, v{69+2*k}")
    A("L_mqtail:")
    mq_tail("x")
    A("L_fin:")
    if stamps:
        A("s_mov_b64 exec, -1")
        A("s_memrealtime s[78:79]")
        A("s_getreg_b32 s77, hwreg(HW_REG_XCC_ID)")
        A("s_waitcnt lgkmcnt(0)")
        A("s_lshl_b32 s66, s2, 3"); A("s_add_u32 s66, s66, s52"); A("s_lshl_b32 s66, s66, 6"); A(f"s_add_u32 s66, s66, {WS_STAMP}")
        A("v_mov_b32 v16, 0"); A("s_mov_b64 exec, 1")
        for k in range(11):
            A(f"v_mov_b32 v17, s{80+2*k}"); A(f"buffer_store_dword v17, v16, s[40:43], s66 offen offset:{4*k}")
        A("v_mov_b32 v17, s78"); A("buffer_store_dword v17, v16, s[40:43], s66 offen offset:44")
        A("v_mov_b32 v17, s77"); A("buffer_store_dword v17, v16, s[40:43], s66 offen offset:48")
    A("L_end:")
    A("s_endpgm")
    A("L_last:")
    A("s_endpgm")
    if stamps:
        z = [("I", __import__("asmgen").Ins(f"s_mov_b32 s{80+2*k}, 0")) for k in range(11)]
        p.items[2:2] = z
    n = p.fix()
    body = p.text()
    out = HEADER + f"; @launch grid=(256,1,1) block=(512,1,1) lds={LDS_BYTES}\n"
    out += '.amdgcn_target "amdgcn-amd-amdhsa--gfx950"\n.text\n' + f".globl {NAME}_kernel\n.p2align 8\n.type {NAME}_kernel,@function\n{NAME}_kernel:\n"
    out += body
    out += f'''.section .rodata,"a"
.p2align 6
.amdhsa_kernel {NAME}_kernel
  .amdhsa_next_free_vgpr 256
  .amdhsa_next_free_sgpr 102
  .amdhsa_accum_offset 256
  .amdhsa_group_segment_fixed_size 0
  .amdhsa_kernarg_size 112
  .amdhsa_user_sgpr_count 2
  .amdhsa_user_sgpr_kernarg_segment_ptr 1
  .amdhsa_system_sgpr_workgroup_id_x 1
  .amdhsa_float_denorm_mode_32 3
.end_amdhsa_kernel
'''
    return out
if __name__ == "__main__":
    open("k1_stamp.s", "w").write(gen(stamps=True))
    open("cdna_kernels/" + NAME + ".s", "w").write(gen(stamps=False))
```
